```python
import torch

def _softmax(x, axis=-1):
    return torch.softmax(x, dim=axis)
def _gelu(x):
    return torch.nn.functional.gelu(x, approximate="tanh")
def _silu(x):
    return torch.nn.functional.silu(x)
def _sigmoid(x):
    return torch.sigmoid(x)
def _layernorm(x, axis=-1, eps=1e-5):
    m = x.mean(dim=axis, keepdim=True)
    v = x.var(dim=axis, keepdim=True, unbiased=False)
    return (x - m) / torch.sqrt(v + eps)
def _scatter_add(tgt, idx, src, axis=0):
    return tgt.clone().index_add_(axis, idx, src)
def _segment_sum(src, seg, n):
    out = torch.zeros((n,) + src.shape[1:], dtype=src.dtype)
    return out.index_add_(0, seg, src)
def _pad(x, pw):
    flat = tuple(v for pair in reversed(pw) for v in pair)
    return torch.nn.functional.pad(x, flat)

kernel_name = 'sequential_preLN__spectral_gfnet__mixer_token_mlp__prompt'

def setup_inputs():

    _w = (lambda a: (lambda t: t.to(torch.bfloat16) if t.is_floating_point() else t)(torch.as_tensor(a)))
    def _A_setup():
        B, S, D = 1, 2048, 448
        Df = D // 2 + 1
        return {
            "x": _w((lambda *s: torch.randn(*s, dtype=torch.bfloat16) * 0.05)(B, S, D)),
            "w_r": _w((lambda *s: torch.randn(*s, dtype=torch.bfloat16) * 0.4)(S, Df) * 0.02),
            "w_i": _w((lambda *s: torch.randn(*s, dtype=torch.bfloat16) * 0.4)(S, Df) * 0.02),
        }
    _A_in = _A_setup()

    def _B_setup():
        B, S, D, F = 1, 2048, 448, 1792
        return {
            "x": _w((lambda *s: torch.randn(*s, dtype=torch.bfloat16) * 0.05)(B, S, D)),
            "w1": _w((lambda *s: torch.randn(*s, dtype=torch.bfloat16) * 0.4)(S, F) * (S ** -0.5)),
            "b1": _w((lambda *s: torch.randn(*s, dtype=torch.bfloat16) * 3.2)(F) * 0.02),
            "w2": _w((lambda *s: torch.randn(*s, dtype=torch.bfloat16) * 0.2)(F, S) * (F ** -0.5)),
            "b2": _w((lambda *s: torch.randn(*s, dtype=torch.bfloat16) * 0.4)(S) * 0.02),
        }
    _B_in = _B_setup()

    return {
        "A_x": _A_in["x"],
        "A_w_r": _A_in["w_r"],
        "A_w_i": _A_in["w_i"],
        "B_x": _B_in["x"],
        "B_w1": _B_in["w1"],
        "B_b1": _B_in["b1"],
        "B_w2": _B_in["w2"],
        "B_b2": _B_in["b2"],
    }

def reference(A_x, A_w_r, A_w_i, B_x, B_w1, B_b1, B_w2, B_b2):
    def _A_ref(x, w_r, w_i):
        B, S, D = x.shape
        X = (lambda x, axes=(-2,-1): torch.fft.rfft2(x.float(), dim=axes))(x, axes=(-2, -1))
        W = w_r + 1j * w_i
        X = X * W
        y = (lambda x, s, axes=(-2,-1): torch.fft.irfft2(x, s=s, dim=axes).to(torch.bfloat16))(X, (S, D), axes=(-2, -1))
        return y

    def _B_ref(x, w1, b1, w2, b2):
        B, S, D = x.shape
        h = _layernorm(x, axis=-1)
        u = torch.einsum("bsd,sf->bdf", h, w1) + b1
        u = _gelu(u)
        y = torch.einsum("bdf,fs->bds", u, w2) + b2
        return (lambda x, *d: x.permute(*d))(y, 0, 2, 1)

    x = A_x
    h = x + _A_ref(_layernorm(x, axis=-1), A_w_r, A_w_i)
    h2 = h + _B_ref(_layernorm(h, axis=-1), B_w1, B_b1, B_w2, B_b2)
    return h2
```

```python
import re

TRANS = ("v_exp_f32", "v_log_f32", "v_rcp_f32", "v_rsq_f32", "v_sqrt_f32", "v_sin_f32", "v_cos_f32", "v_rcp_iflag_f32")

_reg_re = re.compile(r"^(-|\|)?\|?([vas])(\d+|\[(\d+):(\d+)\])\|?$")

def parse_reg(tok):
    tok = tok.strip()
    t = tok
    if t.startswith("-"):
        t = t[1:]
    if t.startswith("abs(") and t.endswith(")"):
        t = t[4:-1]
    t = t.strip("|")
    if t in ("vcc", "exec"):
        return [("s", t + "_lo"), ("s", t + "_hi")]
    if t in ("vcc_lo", "vcc_hi", "exec_lo", "exec_hi", "m0", "scc"):
        return [("s", t)]
    m = re.match(r"^([vas])(\d+)$", t)
    if m:
        return [(m.group(1), int(m.group(2)))]
    m = re.match(r"^([vas])\[(\d+):(\d+)\]$", t)
    if m:
        return [(m.group(1), i) for i in range(int(m.group(2)), int(m.group(3)) + 1)]
    return []

class Ins:
    __slots__ = ("text", "mn", "ops", "mods", "kind", "wr", "rd", "passes", "srcc", "srcab", "dpp", "states", "store_data")
    def __init__(self, text):
        self.text = text
        code = text.split(";")[0].strip()
        parts = code.split(None, 1)
        self.mn = parts[0]
        rest = parts[1] if len(parts) > 1 else ""
        ops, cur, depth = [], "", 0
        for ch in rest:
            if ch == "[" or ch == "(":
                depth += 1
            if ch == "]" or ch == ")":
                depth -= 1
            if ch == "," and depth == 0:
                ops.append(cur.strip()); cur = ""
            else:
                cur += ch
        if cur.strip():
            ops.append(cur.strip())
        mods = ""
        if ops:
            last = ops[-1].split(None, 1)
            ops[-1] = last[0]
            mods = last[1] if len(last) > 1 else ""
        self.ops, self.mods = ops, mods
        self.wr, self.rd = set(), set()
        self.passes = 0
        self.srcc, self.srcab = set(), set()
        self.store_data = set()
        self.dpp = False
        self.states = 1
        mn = self.mn
        R = [parse_reg(o) for o in ops]
        if mn == "s_nop":
            self.kind = "nop"; self.states = int(ops[0], 0) + 1
        elif mn.startswith("v_mfma"):
            self.kind = "mfma"
            self.wr = set(R[0]); self.srcab = set(R[1]) | set(R[2]); self.srcc = set(R[3]) if len(R) > 3 else set()
            self.rd = self.srcab | self.srcc
            self.passes = 8 if "32x32" in mn else 4
            if mn.endswith("_f32") and "x2_f32" in mn: self.passes = 16
            if "16x16x4_f32" in mn: self.passes = 8
        elif mn.startswith("v_"):
            self.kind = "trans" if any(mn.startswith(t) for t in TRANS) else "valu"
            if mn.startswith("v_permlane") and "swap" in mn:
                self.wr = set(R[0]) | set(R[1]); self.rd = set(self.wr)
                self.kind = "permlane"
            elif mn.startswith("v_add_co") or mn.startswith("v_sub_co") or mn.startswith("v_addc_co") or mn.startswith("v_subb_co"):
                self.wr = set(R[0]) | set(R[1])
                for r in R[2:]: self.rd |= set(r)
            else:
                self.wr = set(R[0])
                for r in R[1:]: self.rd |= set(r)
                if mn.startswith("v_fmac") or mn.startswith("v_dot2c") or mn.startswith("v_writelane"):
                    self.rd |= set(R[0])
                if mn.startswith("v_cndmask") and len(ops) == 3:
                    self.rd |= {("s", "vcc_lo"), ("s", "vcc_hi")}
            if "_dpp" in mn or "quad_perm" in mods or "row_" in mods:
                self.dpp = True
                self.rd |= set(R[0])
            if mn.startswith("v_readlane") or mn.startswith("v_readfirstlane"):
                self.kind = "readlane"
        elif mn.startswith("buffer_") or mn.startswith("global_"):
            self.kind = "vmem"
            is_lds = re.search(r"\blds\b", mods) is not None
            if "load" in mn and not is_lds:
                self.wr = set(R[0])
                for r in R[1:]: self.rd |= set(r)
                if "d16" in mn: self.rd |= set(R[0])
            else:
                for r in R: self.rd |= set(r)
                if "store" in mn and ("x4" in mn or "x3" in mn):
                    self.store_data = set(R[0]) if mn.startswith("buffer_") else set(R[1])
                if "atomic" in mn and "sc0" in mods:
                    self.wr = set(R[0])
            if is_lds:
                self.rd.add(("s", "m0")); self.kind = "ldsdma"
        elif mn.startswith("ds_"):
            self.kind = "ds"
            if mn.startswith("ds_read") or mn.startswith("ds_bpermute") or mn.startswith("ds_permute") or mn.startswith("ds_swizzle"):
                self.wr = set(R[0])
                for r in R[1:]: self.rd |= set(r)
            else:
                for r in R: self.rd |= set(r)
        elif mn.startswith("s_"):
            self.kind = "salu"
            if mn.startswith("s_cmp") or mn.startswith("s_cbranch") or mn in ("s_branch", "s_barrier", "s_waitcnt", "s_endpgm", "s_sleep", "s_setprio", "s_bitcmp0_b32", "s_bitcmp1_b32"):
                for r in R: self.rd |= set(r)
            else:
                if R: self.wr = set(R[0])
                for r in R[1:]: self.rd |= set(r)
                if "saveexec" in mn: self.wr |= {("s", "exec_lo"), ("s", "exec_hi")}
        else:
            raise ValueError("unknown instruction: " + text)

def is_valu(i):
    return i.kind in ("valu", "trans", "permlane", "readlane")

def required_gap(p, c):
    need = 0
    vw = {r for r in p.wr if r[0] in "va"}
    sw = {r for r in p.wr if r[0] == "s"}
    if is_valu(p):
        if c.kind == "mfma" and vw & c.rd: need = max(need, 2)
        if c.dpp and vw & c.rd: need = max(need, 2)
        if c.kind == "permlane" and vw & c.rd: need = max(need, 2)
        if c.kind == "readlane" and vw & c.rd: need = max(need, 1)
        if p.kind == "trans" and (is_valu(c) or c.kind == "mfma") and c.kind != "trans" and vw & c.rd: need = max(need, 1)
        if p.kind == "trans" and c.kind == "trans" and vw & c.rd: need = max(need, 1)
        if sw:
            if is_valu(c) and sw & c.rd:
                need = max(need, 4 if c.kind == "readlane" else 2)
            if c.kind in ("vmem", "ldsdma") and sw & c.rd: need = max(need, 5)
            if c.kind == "salu" and sw & c.rd: need = max(need, 1)
            if ("s", "exec_lo") in sw:
                if c.dpp: need = max(need, 5)
                if c.kind in ("mfma", "permlane", "readlane"): need = max(need, 4)
        if "sdwa" in p.mn and is_valu(c) and vw & (c.rd | c.wr): need = max(need, 1)
    if p.kind == "mfma":
        full = {2: 5, 4: 8, 8: 12, 16: 20}[p.passes]
        part = {2: 4, 4: 6, 8: 10, 16: 18}[p.passes]
        war = {2: 1, 4: 3, 8: 7, 16: 15}[p.passes]
        if c.kind == "mfma":
            if p.wr & c.srcab: need = max(need, full)
            if p.wr & c.srcc:
                if not (p.wr == c.srcc and p.passes == c.passes): need = max(need, part)
            elif p.wr & c.wr: need = max(need, part)
        elif is_valu(c) or c.kind in ("vmem", "ds", "ldsdma"):
            if p.wr & (c.rd | c.wr): need = max(need, full)
            if is_valu(c) and p.srcc & c.wr: need = max(need, war)
    if p.kind == "salu" and ("s", "m0") in p.wr and c.kind == "ldsdma": need = max(need, 1)
    if p.store_data and (is_valu(c) or c.kind in ("vmem", "ds", "mfma")) and p.store_data & c.wr: need = max(need, 2)
    return need

class Asm:
    def __init__(self):
        self.items = []
    def __call__(self, text):
        for line in text.strip().split("\n"):
            line = line.strip()
            if not line or line.startswith(";"):
                continue
            if line.endswith(":") or line.startswith("."):
                self.items.append(line)
            else:
                self.items.append(Ins(line))
    def label(self, name):
        self.items.append(name + ":")
    def raw(self, text):
        self.items.append(text)
    def finish(self):
        out, hist = [], []
        for it in self.items:
            if isinstance(it, str):
                out.append(it)
                continue
            need = 0
            dist = 0
            for p in reversed(hist):
                g = required_gap(p, it)
                if g > dist:
                    need = max(need, g - dist)
                dist += p.states
                if dist > 24:
                    break
            while need > 0:
                n = min(need, 16)
                nop = Ins("s_nop %d" % (n - 1))
                out.append(nop); hist.append(nop)
                need -= n
            out.append(it); hist.append(it)
            if len(hist) > 64:
                hist = hist[-40:]
        lines = []
        for o in out:
            lines.append(o if isinstance(o, str) else "    " + o.text)
        return "\n".join(lines) + "\n"
    def fence(self, n=20):
        while n > 0:
            k = min(n, 16)
            self("s_nop %d" % (k - 1)); n -= k

def vr(base, n=1):
    return "v%d" % base if n == 1 else "v[%d:%d]" % (base, base + n - 1)
def ar(base, n=1):
    return "a%d" % base if n == 1 else "a[%d:%d]" % (base, base + n - 1)
def sr(base, n=1):
    return "s%d" % base if n == 1 else "s[%d:%d]" % (base, base + n - 1)
```

```python
import numpy as np
def f16bits(x):
    return np.asarray(x, dtype=np.float64).astype(np.float16).view(np.uint16).astype(np.uint32)
def pack2(lo, hi):
    return f16bits(lo) | (f16bits(hi) << 16)
def f32bits(x):
    return np.asarray(x, dtype=np.float64).astype(np.float32).view(np.uint32)
def cs(num, den):
    num = np.asarray(num) % den
    c = np.cos(2 * np.pi * num / den); s = np.sin(2 * np.pi * num / den)
    c = np.where((4 * num) % den == 0, np.round(c), c)
    s = np.where((4 * num) % den == 0, np.round(s), s)
    return c, s
lane = np.arange(64); G = lane // 16; n = lane % 16
def build():
    T = {}
    re = np.zeros((64, 8)); im = np.zeros((64, 8))
    for j in range(8):
        v = 4 * G + j if j < 4 else 16 + 4 * G + (j - 4)
        c, s = cs(v * n, 28)
        ok = (v < 28) & (n < 15)
        re[:, j] = np.where(ok, c / np.sqrt(28), 0); im[:, j] = np.where(ok, -s / np.sqrt(28), 0)
    T['F28RE'] = pack2(re[:, 0::2], re[:, 1::2])
    T['F28IM'] = pack2(im[:, 0::2], im[:, 1::2])
    idx = 4 * G[:, None] + np.arange(4)[None, :]
    c, s = cs(idx * n[:, None], 16)
    c, s = c / 4, s / 4
    T['F16F_RE'] = pack2(c, s); T['F16F_IM'] = pack2(-s, c)
    T['F16I_RE'] = pack2(c, -s); T['F16I_IM'] = pack2(s, c)
    c, s = cs(idx * n[:, None], 448)
    T['TW448C'] = f32bits(c); T['TW448S'] = f32bits(s)
    c, s = cs(idx * n[:, None], 256)
    T['TW256C'] = f32bits(c); T['TW256S'] = f32bits(s)
    for t in range(2):
        v = (16 * t + n)[:, None]; vp = idx
        c, s = cs(v * vp, 28)
        fac = np.where((vp == 0) | (vp == 14), 1.0, 2.0) / np.sqrt(28)
        ok = (v < 28) & (vp < 15)
        T['G%d' % t] = pack2(np.where(ok, fac * c, 0), np.where(ok, -fac * s, 0))
    return T
ORDER = ['F28RE', 'F28IM', 'F16F_RE', 'F16F_IM', 'TW448C', 'TW448S', 'F16I_RE', 'F16I_IM', 'G0', 'G1', 'TW256C', 'TW256S']
OFF = {k: i * 1024 for i, k in enumerate(ORDER)}
def asm_text(label="tables"):
    T = build()
    s = f".p2align 8\n{label}:\n"
    for k in ORDER:
        a = T[k].astype(np.uint32).reshape(-1)
        assert a.size == 256
        for i in range(0, 256, 8):
            s += ".long " + ",".join("0x%08x" % x for x in a[i:i + 8]) + "\n"
    return s
TOTAL = 1024 * len(ORDER)
```

```python
import sys, os, struct
sys.path.insert(0, os.path.dirname(os.path.abspath(__file__)))
from asmlib import *
import tables
NAME = "sequential_preLN__spectral_gfnet__mixer_token_mlp__prompt"

WS_T1, WS_T2, WS_WT, WS_WMAX, WS_H, WS_HN, WS_G = 0x000000, 0x200000, 0x400000, 0x600000, 0x700000, 0x900000, 0xB00000
SZ_X = 2048 * 448 * 2
SZ_W = 2048 * 225 * 2
SZ_W1 = 2048 * 1792 * 2
SZ_G = 448 * 1792 * 2
KA_X, KA_WR, KA_WI, KA_W1, KA_B1, KA_W2, KA_B2, KA_OUT, KA_DBG, KA_WS = 0, 8, 16, 32, 40, 48, 56, 64, 72, 80

def fbits(x):
    return "0x%08x" % struct.unpack("<I", struct.pack("<f", x))[0]

class Regs:
    def __init__(self, start, limit=256):
        self.n = start; self.limit = limit; self.hi = start
    def alloc(self, n=1, align=None):
        al = align or (4 if n >= 4 else 2 if n >= 2 else 1)
        b = (self.n + al - 1) // al * al
        self.n = b + n
        assert self.n <= self.limit, "out of registers"
        self.hi = max(self.hi, self.n)
        return b
    def mark(self): return self.n
    def release(self, m): self.n = m

def srd(a, d, base, off, nbytes):
    if off:
        a(f"s_add_u32 s{d}, s{base}, {off}\ns_addc_u32 s{d+1}, s{base+1}, 0")
    else:
        a(f"s_mov_b32 s{d}, s{base}\ns_mov_b32 s{d+1}, s{base+1}")
    a(f"s_mov_b32 s{d+2}, {nbytes}\ns_mov_b32 s{d+3}, 0x20000")

def table_srd(a, d):
    a(f"s_getpc_b64 s[{d}:{d+1}]")
    a(f"s_add_u32 s{d}, s{d}, tables@rel32@lo+4")
    a(f"s_addc_u32 s{d+1}, s{d+1}, tables@rel32@hi+12")
    a(f"s_mov_b32 s{d+2}, {tables.TOTAL}\ns_mov_b32 s{d+3}, 0x20000")

def load_table(a, name, dst, vlane16, tsrd, stmp):
    off = tables.OFF[name]
    if off < 4096:
        a(f"buffer_load_dwordx4 {vr(dst,4)}, v{vlane16}, s[{tsrd}:{tsrd+3}], 0 offen offset:{off}")
    else:
        a(f"s_movk_i32 s{stmp}, {off & ~4095}")
        a(f"buffer_load_dwordx4 {vr(dst,4)}, v{vlane16}, s[{tsrd}:{tsrd+3}], s{stmp} offen offset:{off & 4095}")

def cmul_split(a, re, im, c, s, t1, t2, conj_tw):
    for h in (0, 2):
        a(f"v_pk_mul_f32 {vr(t1+h,2)}, {vr(re+h,2)}, {vr(c+h,2)}")
        a(f"v_pk_mul_f32 {vr(t2+h,2)}, {vr(im+h,2)}, {vr(c+h,2)}")
    for h in (0, 2):
        if conj_tw:
            a(f"v_pk_fma_f32 {vr(t1+h,2)}, {vr(im+h,2)}, {vr(s+h,2)}, {vr(t1+h,2)}")
            a(f"v_pk_fma_f32 {vr(t2+h,2)}, {vr(re+h,2)}, {vr(s+h,2)}, {vr(t2+h,2)} neg_lo:[1,0,0] neg_hi:[1,0,0]")
        else:
            a(f"v_pk_fma_f32 {vr(t1+h,2)}, {vr(im+h,2)}, {vr(s+h,2)}, {vr(t1+h,2)} neg_lo:[1,0,0] neg_hi:[1,0,0]")
            a(f"v_pk_fma_f32 {vr(t2+h,2)}, {vr(re+h,2)}, {vr(s+h,2)}, {vr(t2+h,2)}")

def unpack_bf16(a, dst, src):
    a(f"v_lshlrev_b32 v{dst}, 16, v{src}")
    a(f"v_and_b32 v{dst+1}, 0xffff0000, v{src}")

def set_exec(a, mask):
    if mask is None:
        a("s_mov_b64 exec, -1")
    else:
        a(f"s_mov_b32 exec_lo, 0x{mask & 0xffffffff:x}\ns_mov_b32 exec_hi, 0x{mask >> 32:x}")

def layernorm2(a, R, rows, sbase, vinv):
    m0 = R.mark()
    sq = [R.alloc(2), R.alloc(2)]
    sm = [R.alloc(2), R.alloc(2)]
    tmp = [R.alloc(2) for _ in range(4)]
    sP, sS, sQ = sbase, sbase + 2, sbase + 4
    for r in (0, 1):
        a(f"v_readfirstlane_b32 s{sP+r}, v{rows[r][0][0]}")
    for r in (0, 1):
        a(f"v_pk_mul_f32 {vr(sq[r],2)}, {vr(sq[r],2)}, 0 op_sel_hi:[1,0]") if False else None
        a(f"v_mov_b32 v{sq[r]}, 0\nv_mov_b32 v{sq[r]+1}, 0\nv_mov_b32 v{sm[r]}, 0\nv_mov_b32 v{sm[r]+1}, 0")
    ti = 0
    for gi in range(len(rows[0])):
        mask = rows[0][gi][2]
        if mask is not None: set_exec(a, mask)
        for p in range(rows[0][gi][1]):
            for r in (0, 1):
                x = rows[r][gi][0] + 2 * p
                t = tmp[ti % 4]; ti += 1
                a(f"v_pk_add_f32 {vr(t,2)}, {vr(x,2)}, s[{sP}:{sP+1}] op_sel:[0,{r}] op_sel_hi:[1,{r}] neg_lo:[0,1] neg_hi:[0,1]")
                a(f"v_pk_fma_f32 {vr(sq[r],2)}, {vr(t,2)}, {vr(t,2)}, {vr(sq[r],2)}")
                a(f"v_pk_add_f32 {vr(sm[r],2)}, {vr(sm[r],2)}, {vr(t,2)}")
        if mask is not None: set_exec(a, None)
    for r in (0, 1):
        a(f"v_add_f32 v{sm[r]}, v{sm[r]}, v{sm[r]+1}")
        a(f"v_add_f32 v{sq[r]}, v{sq[r]}, v{sq[r]+1}")
    a(f"v_permlane32_swap_b32 v{sm[0]}, v{sm[1]}")
    a(f"v_permlane32_swap_b32 v{sq[0]}, v{sq[1]}")
    a(f"v_add_f32 v{sm[0]}, v{sm[0]}, v{sm[1]}")
    a(f"v_add_f32 v{sq[0]}, v{sq[0]}, v{sq[1]}")
    a(f"v_permlane16_swap_b32 v{sm[0]}, v{sq[0]}")
    z = sm[0]
    a(f"v_add_f32 v{z}, v{sm[0]}, v{sq[0]}")
    for ctl in ("quad_perm:[1,0,3,2]", "quad_perm:[2,3,0,1]", "row_half_mirror", "row_mirror"):
        a(f"v_add_f32_dpp v{z}, v{z}, v{z} {ctl} row_mask:0xf bank_mask:0xf")
    a(f"v_readlane_b32 s{sS}, v{z}, 0\nv_readlane_b32 s{sS+1}, v{z}, 32\nv_readlane_b32 s{sQ}, v{z}, 16\nv_readlane_b32 s{sQ+1}, v{z}, 48")
    vM, vQ, vMb, vT = tmp
    a(f"v_pk_mul_f32 {vr(vM,2)}, s[{sS}:{sS+1}], {vr(vinv,2)} op_sel_hi:[1,0]")
    a(f"v_pk_mul_f32 {vr(vQ,2)}, s[{sQ}:{sQ+1}], {vr(vinv,2)} op_sel_hi:[1,0]")
    a(f"v_pk_fma_f32 {vr(vQ,2)}, {vr(vM,2)}, {vr(vM,2)}, {vr(vQ,2)} neg_lo:[1,0,0] neg_hi:[1,0,0]")
    a(f"v_pk_add_f32 {vr(vM,2)}, {vr(vM,2)}, s[{sP}:{sP+1}]")
    a(f"v_cvt_pk_bf16_f32 v{vT}, v{vQ}, v{vQ+1}")
    a(f"v_cvt_pk_bf16_f32 v{vT+1}, v{vM}, v{vM+1}")
    unpack_bf16(a, vQ, vT)
    unpack_bf16(a, vMb, vT + 1)
    a(f"v_pk_add_f32 {vr(vQ,2)}, {vr(vQ,2)}, {vr(vinv,2)} op_sel:[0,1] op_sel_hi:[1,1]")
    a(f"v_cvt_pk_bf16_f32 v{vT}, v{vQ}, v{vQ+1}")
    unpack_bf16(a, vQ, vT)
    a(f"v_sqrt_f32 v{vQ}, v{vQ}\nv_sqrt_f32 v{vQ+1}, v{vQ+1}")
    a(f"v_cvt_pk_bf16_f32 v{vT}, v{vQ}, v{vQ+1}")
    unpack_bf16(a, vQ, vT)
    a(f"v_rcp_f32 v{vQ}, v{vQ}\nv_rcp_f32 v{vQ+1}, v{vQ+1}")
    for gi in range(len(rows[0])):
        mask = rows[0][gi][2]
        if mask is not None: set_exec(a, mask)
        lst = [(r, rows[r][gi][0] + 2 * p) for p in range(rows[0][gi][1]) for r in (0, 1)]
        for r, x in lst:
            a(f"v_pk_add_f32 {vr(x,2)}, {vr(x,2)}, {vr(vMb,2)} op_sel:[0,{r}] op_sel_hi:[1,{r}] neg_lo:[0,1] neg_hi:[0,1]")
        for r, x in lst:
            a(f"v_cvt_pk_bf16_f32 v{x+1}, v{x}, v{x+1}")
        for r, x in lst:
            a(f"v_lshlrev_b32 v{x}, 16, v{x+1}")
            a(f"v_and_b32 v{x+1}, 0xffff0000, v{x+1}")
        for r, x in lst:
            a(f"v_pk_mul_f32 {vr(x,2)}, {vr(x,2)}, {vr(vQ,2)} op_sel:[0,{r}] op_sel_hi:[1,{r}]")
        if mask is not None: set_exec(a, None)
    R.release(m0)

def r8_matrix(a, R, dst, vlane, s_s2, inverse):
    m0 = R.mark()
    o, t, i0, ph, c = R.alloc(), R.alloc(), R.alloc(), R.alloc(), R.alloc(2)
    st = R.alloc()
    a(f"v_and_b32 v{o}, 4, v{vlane}")
    a(f"v_bfe_u32 v{t}, v{vlane}, 3, 1")
    a(f"v_lshl_add_u32 v{o}, v{t}, 1, v{o}")
    a(f"v_bfe_u32 v{t}, v{vlane}, 1, 1")
    a(f"v_add_u32 v{o}, v{o}, v{t}")
    a(f"v_lshrrev_b32 v{i0}, 5, v{vlane}")
    a(f"v_lshlrev_b32 v{i0}, 2, v{i0}")
    if not inverse:
        a(f"v_lshl_add_u32 v{t}, v{i0}, 8, s{s_s2}")
        a(f"v_mul_u32_u24 v{t}, v{t}, v{o}")
        a(f"v_lshlrev_b32 v{st}, 8, v{o}")
    else:
        a(f"v_lshl_add_u32 v{st}, v{o}, 8, s{s_s2}")
        a(f"v_mul_u32_u24 v{t}, v{st}, v{i0}")
    a(f"v_cvt_f32_u32 v{t}, v{t}")
    a(f"v_cvt_f32_u32 v{st}, v{st}")
    sgn = -1.0 if inverse else 1.0
    a(f"v_mul_f32 v{t}, {fbits(sgn/2048)}, v{t}")
    a(f"v_mul_f32 v{st}, {fbits(sgn/2048)}, v{st}")
    a(f"v_and_b32 v{ph}, 1, v{vlane}")
    a(f"v_cvt_f32_u32 v{ph}, v{ph}")
    a(f"v_mul_f32 v{ph}, 0x3e800000, v{ph}")
    a(f"v_add_f32 v{ph}, v{ph}, v{t}")
    a(f"v_mov_b32 v{t}, {fbits(8**-0.5)}")
    for jj in range(4):
        a(f"v_fract_f32 v{o}, v{ph}")
        a(f"v_cos_f32 v{c}, v{o}\nv_sin_f32 v{c+1}, v{o}")
        if jj < 3:
            a(f"v_add_f32 v{ph}, v{ph}, v{st}")
        a(f"v_mul_f32 v{c}, v{c}, v{t}\nv_mul_f32 v{c+1}, v{c+1}, v{t}")
        a(f"v_cvt_pk_f16_f32 v{dst+jj}, v{c}, v{c+1}")
    R.release(m0)

def kernel_header(name):
    return f".globl {name}\n.p2align 8\n.type {name},@function\n{name}:\n"

def kd(name, nvgpr, nsgpr=96, nagpr=0):
    acc = (nvgpr + 3) // 4 * 4
    return f""".p2align 6
.amdhsa_kernel {name}
  .amdhsa_next_free_vgpr {acc + nagpr if nagpr else nvgpr}
  .amdhsa_next_free_sgpr {nsgpr}
  .amdhsa_accum_offset {acc}
  .amdhsa_group_segment_fixed_size 0
  .amdhsa_kernarg_size 88
  .amdhsa_user_sgpr_count 2
  .amdhsa_user_sgpr_kernarg_segment_ptr 1
  .amdhsa_system_sgpr_workgroup_id_x 1
  .amdhsa_float_denorm_mode_32 3
  .amdhsa_float_denorm_mode_16_64 3
.end_amdhsa_kernel
"""

MASK56 = (1 << 56) - 1
MASK12 = 0x0FFF0FFF0FFF0FFF

def gen_A():
    a = Asm(); R = Regs(1)
    a("s_cmp_ge_u32 s2, 512\ns_cbranch_scc1 A_end")
    a(f"s_load_dwordx4 s[4:7], s[0:1], {KA_X}")
    a(f"s_load_dwordx2 s[8:9], s[0:1], {KA_WI}")
    a(f"s_load_dwordx2 s[10:11], s[0:1], {KA_WS}")
    a("s_and_b32 s12, s2, 7\ns_lshl_b32 s12, s12, 5\ns_bfe_u32 s13, s2, 0x50003\ns_add_u32 s12, s12, s13")
    a("s_cmp_ge_u32 s2, 256\ns_cbranch_scc1 A_wjob")
    TS = 16
    table_srd(a, TS)
    lane, l16, wv = R.alloc(), R.alloc(), R.alloc()
    a(f"v_and_b32 v{lane}, 63, v0\nv_lshlrev_b32 v{l16}, 4, v{lane}\nv_lshrrev_b32 v{wv}, 6, v0")
    a(f"v_readfirstlane_b32 s14, v{wv}")
    F28RE, F28IM, F16RE, F16IM, TWC, TWS, R8 = [R.alloc(4) for _ in range(7)]
    XR = [R.alloc(4), R.alloc(4)]
    X = [R.alloc(8), R.alloc(8)]
    for r in (0, 1):
        for j in range(4): a(f"v_mov_b32 v{XR[r]+j}, 0")
    a("s_lshl_b32 s15, s14, 9\ns_add_u32 s15, s15, s12\ns_mul_i32 s15, s15, 896\ns_add_u32 s3, s15, 229376")
    a("s_waitcnt lgkmcnt(0)")
    srd(a, 20, 4, 0, SZ_X)
    set_exec(a, MASK56)
    a(f"buffer_load_dwordx4 {vr(XR[0],4)}, v{l16}, s[20:23], s15 offen")
    a(f"buffer_load_dwordx4 {vr(XR[1],4)}, v{l16}, s[20:23], s3 offen")
    set_exec(a, None)
    for nm, d in (('F28RE', F28RE), ('F28IM', F28IM), ('TW448C', TWC), ('TW448S', TWS), ('F16F_RE', F16RE), ('F16F_IM', F16IM)):
        load_table(a, nm, d, l16, TS, 13)
    srd(a, 24, 10, WS_T1, 256 * 8192)
    r8_matrix(a, R, R8, lane, 12, False)
    vinv = R.alloc(2)
    a(f"v_mov_b32 v{vinv}, {fbits(1.0/448)}\nv_mov_b32 v{vinv+1}, {fbits(1e-5)}")
    aw, atr, aex, ard, ast = [R.alloc() for _ in range(5)]
    a(f"v_lshl_add_u32 v{aw}, v{wv}, 11, v{l16}")
    a(f"v_lshlrev_b32 v{atr}, 3, v{lane}")
    a(f"v_lshl_add_u32 v{atr}, v{wv}, 11, v{atr}")
    t = R.alloc()
    a(f"v_lshrrev_b32 v{t}, 4, v{lane}\nv_lshlrev_b32 v{t}, 9, v{t}")
    a(f"v_and_b32 v{aex}, 15, v{lane}\nv_lshl_add_u32 v{aex}, v{aex}, 3, v{t}")
    a(f"v_lshl_add_u32 v{aex}, v{wv}, 11, v{aex}")
    a(f"v_lshrrev_b32 v{t}, 5, v{lane}")
    a(f"v_and_b32 v{ard}, 31, v{lane}\nv_lshl_add_u32 v{ard}, v{wv}, 6, v{ard}")
    a(f"v_lshlrev_b32 v{ast}, 13, v{ard}")
    a(f"v_lshl_add_u32 v{ast}, v{t}, 4, v{ast}")
    a(f"v_lshlrev_b32 v{ard}, 3, v{ard}\nv_lshl_add_u32 v{ard}, v{t}, 12, v{ard}")
    a("s_lshl_b32 s15, s12, 5\ns_add_u32 s3, s15, 0x40000")
    a("s_waitcnt vmcnt(6)")
    for r in (0, 1):
        for j in range(4): unpack_bf16(a, X[r] + 2 * j, XR[r] + j)
    layernorm2(a, R, [[(X[0], 4, MASK56)], [(X[1], 4, MASK56)]], 28, vinv)
    for r in (0, 1):
        for j in range(4): a(f"v_cvt_pk_bf16_f32 v{X[r]+2*j+1}, v{X[r]+2*j}, v{X[r]+2*j+1}")
        for j in range(4):
            a(f"v_lshlrev_b32 v{X[r]+2*j}, 16, v{X[r]+2*j+1}\nv_and_b32 v{X[r]+2*j+1}, 0xffff0000, v{X[r]+2*j+1}")
        for j in range(4): a(f"v_cvt_pk_f16_f32 v{XR[r]+j}, v{X[r]+2*j}, v{X[r]+2*j+1}")
        a(f"ds_write_b128 v{aw}, {vr(XR[r],4)} offset:{1024*r}")
    a("s_waitcnt lgkmcnt(0)")
    for r in (0, 1):
        a(f"ds_read_b64_tr_b16 {vr(XR[r],2)}, v{atr} offset:{1024*r}")
        a(f"ds_read_b64_tr_b16 {vr(XR[r]+2,2)}, v{atr} offset:{1024*r+512}")
    DRE = [X[0], X[1]]; DIM = [X[0] + 4, X[1] + 4]
    T1r = [R.alloc(4), R.alloc(4)]; T2r = [R.alloc(4), R.alloc(4)]
    a("s_waitcnt vmcnt(0) lgkmcnt(2)")
    for r in (0, 1):
        if r == 1: a("s_waitcnt lgkmcnt(0)")
        a(f"v_mfma_f32_16x16x32_f16 {vr(DRE[r],4)}, {vr(XR[r],4)}, {vr(F28RE,4)}, 0")
        a(f"v_mfma_f32_16x16x32_f16 {vr(DIM[r],4)}, {vr(XR[r],4)}, {vr(F28IM,4)}, 0")
    for r in (0, 1):
        cmul_split(a, DRE[r], DIM[r], TWC, TWS, T1r[r], T2r[r], True)
        for j in range(4): a(f"v_cvt_pk_f16_f32 v{XR[r]+j}, v{T1r[r]+j}, v{T2r[r]+j}")
        a(f"v_mfma_f32_16x16x32_f16 {vr(DRE[r],4)}, {vr(XR[r],4)}, {vr(F16RE,4)}, 0")
        a(f"v_mfma_f32_16x16x32_f16 {vr(DIM[r],4)}, {vr(XR[r],4)}, {vr(F16IM,4)}, 0")
    E = R.alloc(8)
    for r in (0, 1):
        for j in range(4): a(f"v_cvt_pk_f16_f32 v{E+2*j+r}, v{DRE[r]+j}, v{DIM[r]+j}")
    for j in range(4):
        a(f"ds_write_b64 v{aex}, {vr(E+2*j,2)} offset:{8192+128*j}")
    a("s_waitcnt lgkmcnt(0)\ns_barrier")
    B = [R.alloc(4), R.alloc(4)]
    a(f"v_add_u32 v{t}, 256, v{ard}")
    a(f"ds_read2st64_b64 {vr(B[0],4)}, v{ard} offset0:16 offset1:20")
    a(f"ds_read2st64_b64 {vr(B[1],4)}, v{t} offset0:16 offset1:20")
    D = [R.alloc(16), R.alloc(16)]
    for tl in (0, 1):
        a(f"s_waitcnt lgkmcnt({1-tl})")
        a(f"v_mfma_f32_32x32x16_f16 {vr(D[tl],16)}, {vr(R8,4)}, {vr(B[tl],4)}, 0")
    for tl in (0, 1):
        for j in range(4): a(f"v_cvt_pk_f16_f32 v{B[tl]+j}, v{D[tl]+2*j}, v{D[tl]+2*j+1}")
        a(f"buffer_store_dwordx4 {vr(B[tl],4)}, v{ast}, s[24:27], s{15 if tl == 0 else 3} offen")
    a("s_endpgm")
    hiA = R.hi
    a.label("A_wjob")
    R = Regs(1)
    k, kd_, mir, off, sgn, mx, t = [R.alloc() for _ in range(7)]
    Wv = R.alloc(8); Wh = R.alloc(8)
    ad = [R.alloc() for _ in range(8)]
    a(f"v_and_b32 v{k}, 15, v0\nv_mul_u32_u24 v{k}, 28, v{k}\nv_lshrrev_b32 v{t}, 4, v0\nv_add_u32 v{k}, v{k}, v{t}")
    a(f"v_sub_u32 v{kd_}, 448, v{k}")
    a(f"v_cmp_lt_u32 vcc, 224, v{k}")
    a(f"v_cndmask_b32 v{off}, v{k}, v{kd_}, vcc")
    a(f"v_lshlrev_b32 v{off}, 1, v{off}")
    a(f"v_cndmask_b32 v{mir}, 0, 1, vcc")
    a(f"v_lshlrev_b32 v{sgn}, 31, v{mir}")
    a("s_lshr_b32 s14, s12, 6\ns_lshl_b32 s14, s14, 1\ns_and_b32 s15, s12, 15\ns_lshl_b32 s15, s15, 3\ns_add_u32 s14, s14, s15")
    a("s_bfe_u32 s15, s12, 0x20004\ns_lshl_b32 s15, s15, 9\ns_add_u32 s14, s14, s15")
    for p in (0, 1):
        for r in range(4):
            i = 4 * p + r
            a(f"s_add_u32 s16, s14, {p + 128*r}")
            a("s_sub_u32 s17, 2048, s16\ns_and_b32 s17, s17, 2047\ns_sub_u32 s17, s17, s16\ns_mul_i32 s17, s17, 450\ns_mul_i32 s16, s16, 450")
            a(f"v_add_u32 v{ad[i]}, s16, v{off}")
            a(f"v_mad_i32_i24 v{ad[i]}, v{mir}, s17, v{ad[i]}")
    a("s_waitcnt lgkmcnt(0)")
    srd(a, 20, 6, 0, SZ_W)
    srd(a, 24, 8, 0, SZ_W)
    for i in range(8):
        a(f"buffer_load_ushort v{Wv+i}, v{ad[i]}, s[20:23], 0 offen")
    for i in range(8):
        a(f"buffer_load_ushort v{Wh+i}, v{ad[i]}, s[24:27], 0 offen")
    srd(a, 28, 10, WS_WT, 256 * 8192)
    srd(a, 32, 10, WS_WMAX, 1024)
    a(f"v_lshlrev_b32 v{off}, 13, v0")
    a("s_lshl_b32 s15, s12, 5")
    a(f"v_mov_b32 v{mx}, 0\ns_mov_b32 s16, 0x7fff7fff")
    a("s_waitcnt vmcnt(0)")
    for i in range(8):
        a(f"v_lshl_or_b32 v{Wv+i}, v{Wh+i}, 16, v{Wv+i}")
        a(f"v_and_b32 v{t}, s16, v{Wv+i}")
        a(f"v_pk_max_u16 v{mx}, v{mx}, v{t}")
        a(f"v_xor_b32 v{Wv+i}, v{sgn}, v{Wv+i}")
    a(f"buffer_store_dwordx4 {vr(Wv,4)}, v{off}, s[28:31], s15 offen")
    a(f"buffer_store_dwordx4 {vr(Wv+4,4)}, v{off}, s[28:31], s15 offen offset:16")
    a(f"v_lshrrev_b32 v{t}, 16, v{mx}\nv_and_b32 v{mx}, 0xffff, v{mx}\nv_max_u32 v{mx}, v{mx}, v{t}")
    for ctl in ("quad_perm:[1,0,3,2]", "quad_perm:[2,3,0,1]", "row_half_mirror", "row_mirror"):
        a(f"v_max_u32_dpp v{mx}, v{mx}, v{mx} {ctl} row_mask:0xf bank_mask:0xf")
    a(f"v_lshrrev_b32 v{t}, 4, v0\nv_lshlrev_b32 v{t}, 2, v{t}")
    a(f"ds_write_b32 v{t}, v{mx}")
    a("s_waitcnt lgkmcnt(0)\ns_barrier")
    a(f"v_and_b32 v{t}, 15, v0\nv_lshlrev_b32 v{t}, 2, v{t}")
    a(f"ds_read_b32 v{mx}, v{t}")
    a("s_waitcnt lgkmcnt(0)")
    for ctl in ("quad_perm:[1,0,3,2]", "quad_perm:[2,3,0,1]", "row_half_mirror", "row_mirror"):
        a(f"v_max_u32_dpp v{mx}, v{mx}, v{mx} {ctl} row_mask:0xf bank_mask:0xf")
    a(f"v_cmp_eq_u32 vcc, 0, v0\ns_and_saveexec_b64 s[36:37], vcc\ns_cbranch_execz A_end")
    a(f"s_lshl_b32 s15, s12, 2\nv_mov_b32 v{t}, s15")
    a(f"buffer_store_dword v{mx}, v{t}, s[32:35], 0 offen")
    a.label("A_end")
    a("s_endpgm")
    return a.finish(), max(hiA, R.hi)

def wscale(a, R, wm, dst, inverse):
    a(f"v_max_u32 v{wm}, v{wm}, v{wm+1}\nv_max_u32 v{wm+2}, v{wm+2}, v{wm+3}\nv_max_u32 v{wm}, v{wm}, v{wm+2}")
    for ctl in ("quad_perm:[1,0,3,2]", "quad_perm:[2,3,0,1]", "row_half_mirror", "row_mirror"):
        a(f"v_max_u32_dpp v{wm}, v{wm}, v{wm} {ctl} row_mask:0xf bank_mask:0xf")
    a(f"v_mov_b32 v{wm+1}, v{wm}")
    a(f"v_permlane16_swap_b32 v{wm}, v{wm+1}")
    a(f"v_max_u32 v{wm}, v{wm}, v{wm+1}")
    a(f"v_mov_b32 v{wm+1}, v{wm}")
    a(f"v_permlane32_swap_b32 v{wm}, v{wm+1}")
    a(f"v_max_u32 v{wm}, v{wm}, v{wm+1}")
    a(f"v_lshrrev_b32 v{wm}, 7, v{wm}")
    a(f"v_max_u32 v{wm}, 1, v{wm}\nv_min_u32 v{wm}, 253, v{wm}")
    if not inverse:
        a(f"v_sub_u32 v{wm}, 254, v{wm}")
    a(f"v_lshlrev_b32 v{dst}, 23, v{wm}")

def gen_B():
    a = Asm(); R = Regs(1)
    a("s_cmp_ge_u32 s2, 240\ns_cbranch_scc1 B_end")
    a(f"s_load_dwordx2 s[10:11], s[0:1], {KA_WS}")
    TS = 16
    table_srd(a, TS)
    lane, l16, wv = R.alloc(), R.alloc(), R.alloc()
    a(f"v_and_b32 v{lane}, 63, v0\nv_lshlrev_b32 v{l16}, 4, v{lane}\nv_lshrrev_b32 v{wv}, 6, v0")
    FFR, FFI, FIR, FII, TWC, TWS = [R.alloc(4) for _ in range(6)]
    for nm, d in (('F16F_RE', FFR), ('F16F_IM', FFI), ('TW256C', TWC), ('TW256S', TWS), ('F16I_RE', FIR), ('F16I_IM', FII)):
        load_table(a, nm, d, l16, TS, 13)
    XA = [R.alloc(4), R.alloc(4)]
    WR = R.alloc(8); WM = R.alloc(4)
    ad, aw, t = R.alloc(), R.alloc(), R.alloc()
    a(f"v_lshrrev_b32 v{t}, 4, v{lane}\nv_lshlrev_b32 v{t}, 11, v{t}")
    a(f"v_and_b32 v{ad}, 15, v{lane}\nv_lshl_add_u32 v{ad}, v{ad}, 5, v{t}\nv_lshl_add_u32 v{ad}, v{wv}, 3, v{ad}")
    a(f"v_lshlrev_b32 v{aw}, 5, v0")
    a("s_lshl_b32 s15, s2, 13")
    a("s_waitcnt lgkmcnt(0)")
    srd(a, 20, 10, WS_T1, 256 * 8192)
    srd(a, 24, 10, WS_WT, 256 * 8192)
    srd(a, 28, 10, WS_WMAX, 1024)
    srd(a, 32, 10, WS_T2, 256 * 8192)
    for p in (0, 1):
        for j in range(4):
            a(f"buffer_load_dword v{XA[p]+j}, v{ad}, s[20:23], s15 offen offset:{512*j+4*p}")
    a(f"buffer_load_dwordx4 {vr(WR,4)}, v{aw}, s[24:27], s15 offen")
    a(f"buffer_load_dwordx4 {vr(WR+4,4)}, v{aw}, s[24:27], s15 offen offset:16")
    a(f"buffer_load_dwordx4 {vr(WM,4)}, v{l16}, s[28:31], 0 offen")
    DRE = [R.alloc(4), R.alloc(4)]; DIM = [R.alloc(4), R.alloc(4)]
    T1r = [R.alloc(4), R.alloc(4)]; T2r = [R.alloc(4), R.alloc(4)]
    WRE = [R.alloc(4), R.alloc(4)]; WIM = [R.alloc(4), R.alloc(4)]
    sc = R.alloc(2)
    for p in (0, 1):
        a(f"s_waitcnt vmcnt({7 - 4*p})")
        a(f"v_mfma_f32_16x16x32_f16 {vr(DRE[p],4)}, {vr(XA[p],4)}, {vr(FFR,4)}, 0")
        a(f"v_mfma_f32_16x16x32_f16 {vr(DIM[p],4)}, {vr(XA[p],4)}, {vr(FFI,4)}, 0")
    for p in (0, 1):
        cmul_split(a, DRE[p], DIM[p], TWC, TWS, T1r[p], T2r[p], True)
        for j in range(4): a(f"v_cvt_pk_f16_f32 v{XA[p]+j}, v{T1r[p]+j}, v{T2r[p]+j}")
        a(f"v_mfma_f32_16x16x32_f16 {vr(DRE[p],4)}, {vr(FFR,4)}, {vr(XA[p],4)}, 0")
        a(f"v_mfma_f32_16x16x32_f16 {vr(DIM[p],4)}, {vr(FFI,4)}, {vr(XA[p],4)}, 0")
    a("s_waitcnt vmcnt(0)")
    wscale(a, R, WM, sc, False)
    for p in (0, 1):
        for r in range(4):
            a(f"v_lshlrev_b32 v{WRE[p]+r}, 16, v{WR+4*p+r}\nv_and_b32 v{WIM[p]+r}, 0xffff0000, v{WR+4*p+r}")
        for h in (0, 2):
            a(f"v_pk_mul_f32 {vr(WRE[p]+h,2)}, {vr(WRE[p]+h,2)}, {vr(sc,2)} op_sel_hi:[1,0]")
            a(f"v_pk_mul_f32 {vr(WIM[p]+h,2)}, {vr(WIM[p]+h,2)}, {vr(sc,2)} op_sel_hi:[1,0]")
    for p in (0, 1):
        cmul_split(a, DRE[p], DIM[p], WRE[p], WIM[p], T1r[p], T2r[p], False)
        for j in range(4): a(f"v_cvt_pk_f16_f32 v{XA[p]+j}, v{T1r[p]+j}, v{T2r[p]+j}")
        a(f"v_mfma_f32_16x16x32_f16 {vr(DRE[p],4)}, {vr(XA[p],4)}, {vr(FIR,4)}, 0")
        a(f"v_mfma_f32_16x16x32_f16 {vr(DIM[p],4)}, {vr(XA[p],4)}, {vr(FII,4)}, 0")
    for p in (0, 1):
        cmul_split(a, DRE[p], DIM[p], TWC, TWS, T1r[p], T2r[p], False)
        for j in range(4): a(f"v_cvt_pk_f16_f32 v{XA[p]+j}, v{T1r[p]+j}, v{T2r[p]+j}")
        a(f"v_mfma_f32_16x16x32_f16 {vr(DRE[p],4)}, {vr(FIR,4)}, {vr(XA[p],4)}, 0")
        a(f"v_mfma_f32_16x16x32_f16 {vr(DIM[p],4)}, {vr(FII,4)}, {vr(XA[p],4)}, 0")
    E = WR
    for p in (0, 1):
        for j in range(4): a(f"v_cvt_pk_f16_f32 v{E+2*j+p}, v{DRE[p]+j}, v{DIM[p]+j}")
    for j in range(4):
        a(f"buffer_store_dwordx2 {vr(E+2*j,2)}, v{ad}, s[32:35], s15 offen offset:{512*j}")
    a.label("B_end")
    a("s_endpgm")
    return a.finish(), R.hi

def gen_C():
    a = Asm(); R = Regs(1)
    a("s_cmp_ge_u32 s2, 256\ns_cbranch_scc1 C_end")
    a(f"s_load_dwordx2 s[4:5], s[0:1], {KA_X}")
    a(f"s_load_dwordx2 s[10:11], s[0:1], {KA_WS}")
    a("s_and_b32 s12, s2, 7\ns_lshl_b32 s12, s12, 5\ns_lshr_b32 s13, s2, 3\ns_add_u32 s12, s12, s13")
    TS = 16
    table_srd(a, TS)
    lane, l16, wv = R.alloc(), R.alloc(), R.alloc()
    a(f"v_and_b32 v{lane}, 63, v0\nv_lshlrev_b32 v{l16}, 4, v{lane}\nv_lshrrev_b32 v{wv}, 6, v0")
    a(f"v_readfirstlane_b32 s14, v{wv}")
    FIR, FII, TWC, TWS, G0, G1, R8 = [R.alloc(4) for _ in range(7)]
    for nm, d in (('F16I_RE', FIR), ('F16I_IM', FII), ('TW448C', TWC), ('TW448S', TWS), ('G0', G0), ('G1', G1)):
        load_table(a, nm, d, l16, TS, 13)
    B = [R.alloc(4), R.alloc(4)]
    WM = R.alloc(4)
    XR = [[R.alloc(2), R.alloc(2)], [R.alloc(2), R.alloc(2)]]
    ald, ax, t, G_, n_ = [R.alloc() for _ in range(5)]
    a(f"v_lshrrev_b32 v{G_}, 4, v{lane}\nv_and_b32 v{n_}, 15, v{lane}")
    a(f"v_lshrrev_b32 v{t}, 5, v{lane}")
    col0 = R.alloc()
    a(f"v_and_b32 v{col0}, 31, v{lane}\nv_lshl_add_u32 v{col0}, v{wv}, 6, v{col0}")
    a(f"v_lshlrev_b32 v{ald}, 13, v{col0}\nv_lshl_add_u32 v{ald}, v{t}, 4, v{ald}")
    a(f"v_lshlrev_b32 v{ax}, 5, v{n_}\nv_lshl_add_u32 v{ax}, v{G_}, 3, v{ax}")
    for r in (0, 1):
        a(f"v_mov_b32 v{XR[r][1]}, 0\nv_mov_b32 v{XR[r][1]+1}, 0")
    a("s_lshl_b32 s15, s12, 5\ns_add_u32 s3, s15, 0x40000")
    a("s_lshl_b32 s36, s14, 9\ns_add_u32 s36, s36, s12\ns_mul_i32 s36, s36, 896\ns_add_u32 s37, s36, 229376")
    a("s_waitcnt lgkmcnt(0)")
    srd(a, 20, 10, WS_T2, 240 * 8192)
    a(f"buffer_load_dwordx4 {vr(B[0],4)}, v{ald}, s[20:23], s15 offen")
    a(f"buffer_load_dwordx4 {vr(B[1],4)}, v{ald}, s[20:23], s3 offen")
    srd(a, 24, 4, 0, SZ_X)
    srd(a, 28, 10, WS_WMAX, 1024)
    a(f"buffer_load_dwordx4 {vr(WM,4)}, v{l16}, s[28:31], 0 offen")
    for r in (0, 1):
        a(f"buffer_load_dwordx2 {vr(XR[r][0],2)}, v{ax}, s[24:27], s{36+r} offen")
    set_exec(a, MASK12)
    for r in (0, 1):
        a(f"buffer_load_dwordx2 {vr(XR[r][1],2)}, v{ax}, s[24:27], s{36+r} offen offset:512")
    set_exec(a, None)
    srd(a, 32, 10, WS_H, SZ_X)
    srd(a, 40, 10, WS_HN, SZ_X)
    r8_matrix(a, R, R8, lane, 12, True)
    vinv = R.alloc(2)
    a(f"v_mov_b32 v{vinv}, {fbits(1.0/448)}\nv_mov_b32 v{vinv+1}, {fbits(1e-5)}")
    aew, aer, ahw = R.alloc(), R.alloc(), R.alloc()
    a(f"v_lshlrev_b32 v{aew}, 2, v{col0}\nv_lshl_add_u32 v{aew}, v{t}, 12, v{aew}")
    a(f"v_lshlrev_b32 v{aer}, 6, v{n_}\nv_lshl_add_u32 v{aer}, v{G_}, 4, v{aer}")
    a(f"v_lshl_add_u32 v{ahw}, v{wv}, 11, v{aer}")
    a(f"v_lshl_add_u32 v{aer}, v{wv}, 11, v{aer}")
    D = [R.alloc(16), R.alloc(16)]
    for tl in (0, 1):
        a(f"s_waitcnt vmcnt({6-tl})")
        a(f"v_mfma_f32_32x32x16_f16 {vr(D[tl],16)}, {vr(R8,4)}, {vr(B[tl],4)}, 0")
    for tl in (0, 1):
        for j in range(4): a(f"v_cvt_pk_f16_f32 v{B[tl]+j}, v{D[tl]+2*j}, v{D[tl]+2*j+1}")
        for j in range(4):
            a(f"ds_write_b32 v{aew}, v{B[tl]+j} offset:{1024*j + 128*tl}")
    a("s_waitcnt lgkmcnt(0)\ns_barrier")
    XA = B
    for r in (0, 1):
        a(f"ds_read_b128 {vr(XA[r],4)}, v{aer} offset:{1024*r}")
    sc = R.alloc(2)
    a("s_waitcnt vmcnt(4)")
    wscale(a, R, WM, sc, True)
    DRE = [D[0], D[0] + 8]; DIM = [D[0] + 4, D[0] + 12]
    T1r = [D[1], D[1] + 8]; T2r = [D[1] + 4, D[1] + 12]
    for r in (0, 1):
        a(f"s_waitcnt lgkmcnt({1-r})")
        a(f"v_mfma_f32_16x16x32_f16 {vr(DRE[r],4)}, {vr(XA[r],4)}, {vr(FIR,4)}, 0")
        a(f"v_mfma_f32_16x16x32_f16 {vr(DIM[r],4)}, {vr(XA[r],4)}, {vr(FII,4)}, 0")
    Y = [[DRE[0], DIM[0]], [DRE[1], DIM[1]]]
    for r in (0, 1):
        cmul_split(a, DRE[r], DIM[r], TWC, TWS, T1r[r], T2r[r], False)
        for j in range(4): a(f"v_cvt_pk_f16_f32 v{XA[r]+j}, v{T1r[r]+j}, v{T2r[r]+j}")
        a(f"v_mfma_f32_16x16x32_f16 {vr(Y[r][0],4)}, {vr(XA[r],4)}, {vr(G0,4)}, 0")
        a(f"v_mfma_f32_16x16x32_f16 {vr(Y[r][1],4)}, {vr(XA[r],4)}, {vr(G1,4)}, 0")
    XF = [[T1r[0], T2r[0]], [T1r[1], T2r[1]]]
    a("s_waitcnt vmcnt(0)")
    for r in (0, 1):
        for tl in (0, 1):
            for j in (0, 1): unpack_bf16(a, XF[r][tl] + 2 * j, XR[r][tl] + j)
    lst = [(r, tl, h) for r in (0, 1) for tl in (0, 1) for h in (0, 2)]
    for r, tl, h in lst:
        a(f"v_pk_mul_f32 {vr(Y[r][tl]+h,2)}, {vr(Y[r][tl]+h,2)}, {vr(sc,2)} op_sel_hi:[1,0]")
    for r, tl, h in lst:
        y = Y[r][tl] + h
        a(f"v_cvt_pk_bf16_f32 v{y+1}, v{y}, v{y+1}")
    for r, tl, h in lst:
        y = Y[r][tl] + h
        a(f"v_lshlrev_b32 v{y}, 16, v{y+1}\nv_and_b32 v{y+1}, 0xffff0000, v{y+1}")
    for r, tl, h in lst:
        a(f"v_pk_add_f32 {vr(Y[r][tl]+h,2)}, {vr(Y[r][tl]+h,2)}, {vr(XF[r][tl]+h,2)}")
    for r, tl, h in lst:
        y = Y[r][tl] + h
        a(f"v_cvt_pk_bf16_f32 v{XR[r][tl]+h//2}, v{y}, v{y+1}")
    for r in (0, 1):
        a(f"buffer_store_dwordx2 {vr(XR[r][0],2)}, v{ax}, s[32:35], s{36+r} offen")
    set_exec(a, MASK12)
    for r in (0, 1):
        a(f"buffer_store_dwordx2 {vr(XR[r][1],2)}, v{ax}, s[32:35], s{36+r} offen offset:512")
    set_exec(a, None)
    for r, tl, h in lst:
        unpack_bf16(a, Y[r][tl] + h, XR[r][tl] + h // 2)
    rows = [[(Y[r][0], 2, None), (Y[r][1], 2, MASK12)] for r in (0, 1)]
    layernorm2(a, R, rows, 44, vinv)
    for r, tl, h in lst:
        y = Y[r][tl] + h
        a(f"v_cvt_pk_bf16_f32 v{y+1}, v{y}, v{y+1}")
    for r, tl, h in lst:
        y = Y[r][tl] + h
        a(f"v_lshlrev_b32 v{y}, 16, v{y+1}\nv_and_b32 v{y+1}, 0xffff0000, v{y+1}")
    layernorm2(a, R, rows, 44, vinv)
    for tl in (0, 1):
        for j in range(4):
            a(f"v_cvt_pk_bf16_f32 v{XA[tl]+j}, v{Y[0][tl]+j}, v{Y[1][tl]+j}")
        a(f"ds_write_b128 v{ahw}, {vr(XA[tl],4)} offset:{8192 + 1024*tl}")
    dd, ahs = R.alloc(), R.alloc()
    a(f"v_and_b32 v{dd}, 0xc3, v0")
    a(f"v_bfe_u32 v{t}, v0, 2, 2\nv_lshl_add_u32 v{dd}, v{t}, 4, v{dd}")
    a(f"v_bfe_u32 v{t}, v0, 4, 2\nv_lshl_add_u32 v{dd}, v{t}, 2, v{dd}")
    a(f"v_lshlrev_b32 v{dd}, 2, v{dd}")
    a(f"v_lshrrev_b32 v{t}, 4, v0\nv_lshlrev_b32 v{ahs}, 16, v{t}\nv_lshl_add_u32 v{ahs}, v{n_}, 4, v{ahs}")
    a("s_lshl_b32 s15, s12, 8\ns_add_u32 s3, s15, 0x100000")
    a("s_waitcnt lgkmcnt(0)\ns_barrier")
    O = [D[1], D[1] + 4]
    for rd in (0, 1):
        a(f"ds_read2st64_b32 {vr(O[rd],2)}, v{dd} offset0:{32+4*rd} offset1:{40+4*rd}")
        a(f"ds_read2st64_b32 {vr(O[rd]+2,2)}, v{dd} offset0:{48+4*rd} offset1:{56+4*rd}")
    a("s_waitcnt lgkmcnt(2)")
    a(f"buffer_store_dwordx4 {vr(O[0],4)}, v{ahs}, s[40:43], s15 offen")
    a("s_waitcnt lgkmcnt(0)")
    a(f"buffer_store_dwordx4 {vr(O[1],4)}, v{ahs}, s[40:43], s3 offen")
    a.label("C_end")
    a("s_endpgm")
    return a.finish(), R.hi

def gen_gemm(which):
    a = Asm(); R = Regs(1)
    L = "D" if which == 1 else "E"
    NK = 16 if which == 1 else 14
    P = 7
    WROW = 3584 if which == 1 else 4096
    per = 25 if which == 1 else 28
    ntile = 196 if which == 1 else 224
    a(f"s_cmp_ge_u32 s2, {8*per}\ns_cbranch_scc1 {L}_end")
    a(f"s_load_dwordx4 s[4:7], s[0:1], {KA_W1 if which == 1 else KA_W2}")
    a(f"s_load_dwordx2 s[10:11], s[0:1], {KA_WS}")
    if which == 2:
        a(f"s_load_dwordx2 s[8:9], s[0:1], {KA_OUT}")
    a(f"s_and_b32 s12, s2, 7\ns_mul_i32 s12, s12, {per}\ns_lshr_b32 s13, s2, 3\ns_add_u32 s12, s12, s13")
    a(f"s_cmp_ge_u32 s12, {ntile}\ns_cbranch_scc1 {L}_end")
    a("s_mul_i32 s13, s12, 9363\ns_lshr_b32 s13, s13, 16")
    a("s_mul_i32 s14, s13, 7\ns_sub_u32 s14, s12, s14")
    lane, l16, wv, t, t2 = [R.alloc() for _ in range(5)]
    a(f"v_and_b32 v{lane}, 63, v0\nv_lshlrev_b32 v{l16}, 4, v{lane}\nv_lshrrev_b32 v{wv}, 6, v0")
    a(f"v_readfirstlane_b32 s15, v{wv}")
    adma = R.alloc()
    a(f"v_bfe_u32 v{t}, v{lane}, 4, 2\nv_lshlrev_b32 v{t}, 1, v{t}\nv_and_b32 v{t2}, 7, v{lane}\nv_xor_b32 v{t}, v{t}, v{t2}\nv_lshlrev_b32 v{adma}, 4, v{t}")
    if which == 1:
        a(f"v_bfe_u32 v{t}, v{lane}, 3, 2\nv_lshlrev_b32 v{t}, 8, v{t}\nv_lshrrev_b32 v{t2}, 5, v{lane}\nv_add_u32 v{t}, v{t}, v{t2}")
    else:
        a(f"v_lshrrev_b32 v{t}, 3, v{lane}")
    a(f"v_mul_u32_u24 v{t}, {WROW}, v{t}\nv_add_u32 v{adma}, v{adma}, v{t}")
    atr = [R.alloc() for _ in range(4)]
    a(f"v_lshrrev_b32 v{t}, 2, v{lane}")
    a(f"v_lshlrev_b32 v{atr[0]}, 7, v{t}")
    a(f"v_bfe_u32 v{t2}, v{lane}, 3, 2\nv_lshlrev_b32 v{t2}, 5, v{t2}")
    a(f"v_add_u32 v{atr[0]}, v{atr[0]}, v{t2}")
    a(f"v_and_b32 v{t2}, 3, v{lane}\nv_lshl_add_u32 v{atr[0]}, v{t2}, 3, v{atr[0]}")
    RING = P * 4096
    a(f"s_mul_i32 s16, s15, {RING}")
    a(f"v_add_u32 v{atr[0]}, s16, v{atr[0]}")
    for q in (1, 2, 3):
        a(f"v_xor_b32 v{atr[q]}, {32*q}, v{atr[0]}")
    ACC = R.alloc(64)
    ACT = [R.alloc(16) for _ in range(P)]
    WF = [R.alloc(16), R.alloc(16)]
    if which == 1:
        a(f"s_mul_i32 s17, s15, {64*3584}\ns_lshl_b32 s18, s13, 7\ns_add_u32 s17, s17, s18")
        a("s_lshl_b32 s18, s14, 18\ns_lshl_b32 s19, s15, 14\ns_add_u32 s18, s18, s19")
        ABLK = 65536
    else:
        a(f"s_mul_i32 s17, s15, {14*32*4096}\ns_lshl_b32 s18, s13, 7\ns_add_u32 s17, s17, s18")
        a(f"s_mul_i32 s18, s14, {4*56*1024}\ns_mul_i32 s19, s15, {14*1024}\ns_add_u32 s18, s18, s19")
        ABLK = 56 * 1024
    a("s_waitcnt lgkmcnt(0)")
    srd(a, 20, 4, 0, SZ_W1)
    srd(a, 24, 10, WS_HN if which == 1 else WS_G, SZ_X if which == 1 else SZ_G)
    def issue(kb):
        slot = kb % P
        for i in range(4):
            woff = ((4 * kb + 2 * (i % 2) + 1024 * (i // 2)) * 3584) if which == 1 else ((32 * kb + 8 * i) * 4096)
            a(f"s_add_u32 m0, s16, {slot*4096 + i*1024}")
            a(f"s_add_u32 s28, s17, {woff}")
            a(f"buffer_load_dwordx4 v{adma}, s[20:23], s28 offen lds")
        for b in range(4):
            a(f"s_add_u32 s29, s18, {b*ABLK + kb*1024}")
            a(f"buffer_load_dwordx4 {vr(ACT[slot]+4*b,4)}, v{l16}, s[24:27], s29 offen")
    for kb in range(P): issue(kb)
    for kb in range(NK):
        slot = kb % P
        inflight = min(P, NK - kb)
        a(f"s_waitcnt vmcnt({8*(inflight-1)})")
        wf = WF[kb % 2]
        for q in range(4):
            for e in (0, 1):
                a(f"ds_read_b64_tr_b16 {vr(wf+4*q+2*e,2)}, v{atr[q]} offset:{slot*4096 + 2048*e}")
        for q in range(4):
            a(f"s_waitcnt lgkmcnt({2*(3-q)})")
            for b in range(4):
                if which == 1:
                    d = ACC + 16 * b + 4 * q
                    c = "0" if kb == 0 else vr(d, 4)
                    a(f"v_mfma_f32_16x16x32_bf16 {vr(d,4)}, {vr(wf+4*q,4)}, {vr(ACT[slot]+4*b,4)}, {c}")
                else:
                    d = ACC + 16 * q + 4 * b
                    c = "0" if kb == 0 else vr(d, 4)
                    a(f"v_mfma_f32_16x16x32_bf16 {vr(d,4)}, {vr(ACT[slot]+4*b,4)}, {vr(wf+4*q,4)}, {c}")
        if kb + P < NK: issue(kb + P)
    G_, n_ = R.alloc(), R.alloc()
    a(f"v_lshrrev_b32 v{G_}, 4, v{lane}\nv_and_b32 v{n_}, 15, v{lane}")
    EP = ACT[0]
    if which == 1:
        srd(a, 32, 6, 0, 1792 * 2)
        a(f"v_lshlrev_b32 v{t}, 3, v{G_}\ns_lshl_b32 s28, s13, 7")
        for q in range(4):
            a(f"buffer_load_dwordx2 {vr(EP+2*q,2)}, v{t}, s[32:35], s28 offen offset:{32*q}")
        srd(a, 36, 10, WS_G, SZ_G)
    else:
        srd(a, 32, 6, 0, 2048 * 2)
        srd(a, 36, 10, WS_H, SZ_X)
        srd(a, 40, 8, 0, SZ_X)
        ao = R.alloc()
        a(f"s_lshl_b32 s28, s13, 6\ns_lshl_b32 s29, s15, 4\ns_add_u32 s28, s28, s29")
        a(f"v_add_u32 v{t}, s28, v{n_}\nv_mul_u32_u24 v{ao}, 896, v{t}\nv_lshl_add_u32 v{ao}, v{G_}, 5, v{ao}")
        a(f"v_lshlrev_b32 v{t}, 1, v{t}\ns_lshl_b32 s29, s14, 7\nv_mov_b32 v{EP+8}, 0")
        a(f"buffer_load_dwordx4 {vr(EP,4)}, v{ao}, s[36:39], s29 offen")
        a(f"buffer_load_dwordx4 {vr(EP+4,4)}, v{ao}, s[36:39], s29 offen offset:16")
        a(f"buffer_load_short_d16_hi v{EP+8}, v{t}, s[32:35], 0 offen")
    a("s_barrier")
    ar_ = R.alloc()
    a(f"v_lshl_add_u32 v{ar_}, v{wv}, 14, v{l16}")
    for o in range(4):
        for j in range(4):
            a(f"ds_write_b128 v{ar_}, {vr(ACC+16*o+4*j,4)} offset:{o*4096 + j*1024}")
    a(f"v_lshl_add_u32 v{ar_}, v{wv}, 12, v{l16}")
    a("s_waitcnt lgkmcnt(0)\ns_barrier")
    for s_ in range(4):
        for j in range(4):
            a(f"ds_read_b128 {vr(ACC+16*s_+4*j,4)}, v{ar_} offset:{s_*16384 + j*1024}")
    a("s_waitcnt lgkmcnt(8)")
    for h in range(0, 16, 2): a(f"v_pk_add_f32 {vr(ACC+h,2)}, {vr(ACC+h,2)}, {vr(ACC+16+h,2)}")
    a("s_waitcnt lgkmcnt(0)")
    for h in range(0, 16, 2): a(f"v_pk_add_f32 {vr(ACC+32+h,2)}, {vr(ACC+32+h,2)}, {vr(ACC+48+h,2)}")
    for h in range(0, 16, 2): a(f"v_pk_add_f32 {vr(ACC+h,2)}, {vr(ACC+h,2)}, {vr(ACC+32+h,2)}")
    U = ACC; TM = ACC + 16; TM2 = ACC + 32
    def round_bf16(base):
        for h in range(0, 16, 2): a(f"v_cvt_pk_bf16_f32 v{base+h+1}, v{base+h}, v{base+h+1}")
        for h in range(0, 16, 2): a(f"v_lshlrev_b32 v{base+h}, 16, v{base+h+1}\nv_and_b32 v{base+h+1}, 0xffff0000, v{base+h+1}")
    round_bf16(U)
    a("s_waitcnt vmcnt(0)")
    if which == 1:
        for i in range(8): unpack_bf16(a, TM + 2 * i, EP + i)
        for h in range(0, 16, 2): a(f"v_pk_add_f32 {vr(U+h,2)}, {vr(U+h,2)}, {vr(TM+h,2)}")
        round_bf16(U)
        import math
        k0 = -2 * math.sqrt(2 / math.pi) * math.log2(math.e); k1 = k0 * 0.044715
        a(f"s_mov_b32 s28, {fbits(k0)}\ns_mov_b32 s29, {fbits(k0)}\ns_mov_b32 s30, {fbits(k1)}\ns_mov_b32 s31, {fbits(k1)}")
        a(f"v_mov_b32 v{TM2}, s28\nv_mov_b32 v{TM2+1}, s28")
        for h in range(0, 16, 2): a(f"v_pk_mul_f32 {vr(TM+h,2)}, {vr(U+h,2)}, {vr(U+h,2)}")
        for h in range(0, 16, 2): a(f"v_pk_fma_f32 {vr(TM+h,2)}, {vr(TM+h,2)}, s[30:31], {vr(TM2,2)}")
        for h in range(0, 16, 2): a(f"v_pk_mul_f32 {vr(TM+h,2)}, {vr(TM+h,2)}, {vr(U+h,2)}")
        for i in range(16): a(f"v_exp_f32 v{TM+i}, v{TM+i}")
        for h in range(0, 16, 2): a(f"v_pk_add_f32 {vr(TM+h,2)}, {vr(TM+h,2)}, 1.0 op_sel_hi:[1,0]")
        for i in range(16): a(f"v_rcp_f32 v{TM+i}, v{TM+i}")
        for h in range(0, 16, 2): a(f"v_pk_mul_f32 {vr(U+h,2)}, {vr(U+h,2)}, {vr(TM+h,2)}")
        for i in range(8): a(f"v_cvt_pk_bf16_f32 v{TM2+i}, v{U+2*i}, v{U+2*i+1}")
        a(f"s_lshl_b32 s28, s14, 2\ns_add_u32 s28, s28, s15\ns_mul_i32 s28, s28, {56*1024}\ns_lshl_b32 s29, s13, 11\ns_add_u32 s28, s28, s29")
        a(f"buffer_store_dwordx4 {vr(TM2,4)}, v{l16}, s[36:39], s28 offen")
        a(f"buffer_store_dwordx4 {vr(TM2+4,4)}, v{l16}, s[36:39], s28 offen offset:1024")
    else:
        for h in range(0, 16, 2): a(f"v_pk_add_f32 {vr(U+h,2)}, {vr(U+h,2)}, {vr(EP+8,2)} op_sel_hi:[1,0]")
        round_bf16(U)
        for i in range(8): unpack_bf16(a, TM + 2 * i, EP + i)
        for h in range(0, 16, 2): a(f"v_pk_add_f32 {vr(U+h,2)}, {vr(U+h,2)}, {vr(TM+h,2)}")
        for i in range(8): a(f"v_cvt_pk_bf16_f32 v{TM2+i}, v{U+2*i}, v{U+2*i+1}")
        a(f"buffer_store_dwordx4 {vr(TM2,4)}, v{ao}, s[40:43], s29 offen")
        a(f"buffer_store_dwordx4 {vr(TM2+4,4)}, v{ao}, s[40:43], s29 offen offset:16")
    a.label(f"{L}_end")
    a("s_endpgm")
    return a.finish(), R.hi, max(4 * RING, 65536)

def main(out):
    A, nA = gen_A(); B, nB = gen_B(); C, nC = gen_C()
    D, nD, ldsD = gen_gemm(1); E, nE, ldsE = gen_gemm(2)
    hdr = open(f"cdna_kernels/{NAME}.s.ref").read().split("; Override")[0]
    s = hdr
    s += f"; @launch kernel=fa_kernel grid=(512,1,1) block=(256,1,1) lds=16384\n"
    s += f"; @launch kernel=fb_kernel grid=(240,1,1) block=(256,1,1) lds=0\n"
    s += f"; @launch kernel=fc_kernel grid=(256,1,1) block=(256,1,1) lds=16384\n"
    s += f"; @launch kernel=fd_kernel grid=(200,1,1) block=(256,1,1) lds={ldsD}\n"
    s += f"; @launch kernel=fe_kernel grid=(224,1,1) block=(256,1,1) lds={ldsE}\n"
    s += '.amdgcn_target "amdgcn-amd-amdhsa--gfx950"\n.text\n'
    for nm, body in (("fa_kernel", A), ("fb_kernel", B), ("fc_kernel", C), ("fd_kernel", D), ("fe_kernel", E)):
        s += kernel_header(nm) + body
    s += '.section .rodata,"a"\n'
    for nm, n in (("fa_kernel", nA), ("fb_kernel", nB), ("fc_kernel", nC), ("fd_kernel", nD), ("fe_kernel", nE)):
        s += kd(nm, n)
    s += tables.asm_text()
    open(out, "w").write(s)
    print("vgprs", nA, nB, nC, nD, nE, "lds", ldsD, ldsE, "bytes", len(s))

if __name__ == "__main__":
    main(sys.argv[1] if len(sys.argv) > 1 else f"cdna_kernels/{NAME}.s")
```
